```python
import torch

def _softmax(x, axis=-1):
    return torch.softmax(x, dim=axis)
def _gelu(x):
    return torch.nn.functional.gelu(x, approximate="tanh")
def _silu(x):
    return torch.nn.functional.silu(x)
def _sigmoid(x):
    return torch.sigmoid(x)
def _layernorm(x, axis=-1, eps=1e-5):
    m = x.mean(dim=axis, keepdim=True)
    v = x.var(dim=axis, keepdim=True, unbiased=False)
    return (x - m) / torch.sqrt(v + eps)
def _scatter_add(tgt, idx, src, axis=0):
    return tgt.clone().index_add_(axis, idx, src)
def _segment_sum(src, seg, n):
    out = torch.zeros((n,) + src.shape[1:], dtype=src.dtype)
    return out.index_add_(0, seg, src)
def _pad(x, pw):
    flat = tuple(v for pair in reversed(pw) for v in pair)
    return torch.nn.functional.pad(x, flat)

kernel_name = 'parallel_sum__mha_block_cached__mixer_token_mlp__decode'

def setup_inputs():

    _w = (lambda a: (lambda t: t.to(torch.bfloat16) if t.is_floating_point() else t)(torch.as_tensor(a)))
    def _A_setup():
        B, Sq, D = 1, 1, 512
        H, Sk, Dh = 32, 32768, 128
        return {
            "x": _w((lambda *s: torch.randn(*s, dtype=torch.bfloat16) * 0.05)(B, Sq, D)),
            "k_cache": _w((lambda *s: torch.randn(*s, dtype=torch.bfloat16) * 3.2)(B, H, Sk, Dh)),
            "v_cache": _w((lambda *s: torch.randn(*s, dtype=torch.bfloat16) * 0.8)(B, H, Sk, Dh)),
            "wq": _w((lambda *s: torch.randn(*s, dtype=torch.bfloat16) * 3.2)(D, H * Dh) * (D ** -0.5)),
            "wo": _w((lambda *s: torch.randn(*s, dtype=torch.bfloat16) * 0.8)(H * Dh, D) * ((H * Dh) ** -0.5)),
        }
    _A_in = _A_setup()

    def _B_setup():
        B, S, D, F = 1, 1, 512, 1792
        return {
            "x": _w((lambda *s: torch.randn(*s, dtype=torch.bfloat16) * 0.05)(B, S, D)),
            "w1": _w((lambda *s: torch.randn(*s, dtype=torch.bfloat16) * 3.2)(S, F) * (S ** -0.5)),
            "b1": _w((lambda *s: torch.randn(*s, dtype=torch.bfloat16) * 3.2)(F) * 0.02),
            "w2": _w((lambda *s: torch.randn(*s, dtype=torch.bfloat16) * 0.4)(F, S) * (F ** -0.5)),
            "b2": _w((lambda *s: torch.randn(*s, dtype=torch.bfloat16) * 0.4)(S) * 0.02),
        }
    _B_in = _B_setup()

    return {
        "A_x": _A_in["x"],
        "A_k_cache": _A_in["k_cache"],
        "A_v_cache": _A_in["v_cache"],
        "A_wq": _A_in["wq"],
        "A_wo": _A_in["wo"],
        "B_x": _B_in["x"],
        "B_w1": _B_in["w1"],
        "B_b1": _B_in["b1"],
        "B_w2": _B_in["w2"],
        "B_b2": _B_in["b2"],
    }

def reference(A_x, A_k_cache, A_v_cache, A_wq, A_wo, B_x, B_w1, B_b1, B_w2, B_b2):
    def _A_ref(x, k_cache, v_cache, wq, wo):
        B, Sq, D = x.shape
        H, Dh = 32, 128
        q = (lambda x, *d: x.permute(*d))((x @ wq).reshape(B, Sq, H, Dh), 0, 2, 1, 3)
        scores = torch.einsum("bhqd,bhkd->bhqk", q, k_cache) * (Dh ** -0.5)
        p = _softmax(scores, axis=-1)
        o = torch.einsum("bhqk,bhkd->bhqd", p, v_cache)
        return (lambda x, *d: x.permute(*d))(o, 0, 2, 1, 3).reshape(B, Sq, H * Dh) @ wo

    def _B_ref(x, w1, b1, w2, b2):
        B, S, D = x.shape
        h = _layernorm(x, axis=-1)
        u = torch.einsum("bsd,sf->bdf", h, w1) + b1
        u = _gelu(u)
        y = torch.einsum("bdf,fs->bds", u, w2) + b2
        return (lambda x, *d: x.permute(*d))(y, 0, 2, 1)

    x = A_x
    xn = _layernorm(x, axis=-1)
    return x + _A_ref(xn, A_k_cache, A_v_cache, A_wq, A_wo) + _B_ref(xn, B_w1, B_b1, B_w2, B_b2)
```

```python
import re

_REG = re.compile(r"^-?(?:abs\()?\|?([vas])(?:(\d+)|\[(\d+):(\d+)\])\|?\)?$")
TRANS = ("v_exp_f32", "v_log_f32", "v_rcp_f32", "v_rsq_f32", "v_sqrt_f32", "v_sin_f32", "v_cos_f32")
RMW_DST = ("v_fmac_f32", "v_dot2c", "v_writelane")


def regs_of(tok):
    tok = tok.strip()
    if tok in ("vcc", "exec"):
        return {(tok, 0)}
    if tok == "m0":
        return {("m0", 0)}
    m = _REG.match(tok)
    if not m:
        return set()
    k = m.group(1)
    if m.group(2) is not None:
        return {(k, int(m.group(2)))}
    return {(k, i) for i in range(int(m.group(3)), int(m.group(4)) + 1)}


class Rec:
    __slots__ = ("op", "cls", "rd", "wr", "passes", "A", "B", "C", "dpp", "trans", "perm", "lane", "wide", "data", "states")


def parse(text):
    t = text.split(";")[0].strip()
    op, _, rest = t.partition(" ")
    toks = []
    for x in rest.split(","):
        x = x.strip()
        if not x:
            continue
        toks.append(x.split()[0] if not x.startswith("abs(") else x.split()[0])
    r = Rec()
    r.op = op
    r.rd, r.wr = set(), set()
    r.passes = 0
    r.A = r.B = r.C = set()
    r.dpp = r.trans = r.perm = r.lane = r.wide = False
    r.data = set()
    r.states = 1
    R = [regs_of(x) for x in toks]
    allb = lambda xs: set().union(*xs) if xs else set()
    if op == "s_nop":
        r.cls = "nop"
        r.states = int(toks[0]) + 1
    elif op.startswith("v_mfma"):
        r.cls = "mfma"
        r.passes = 2 if "4x4x4" in op else 4 if "16x16x32" in op or "16x16x16" in op else 8
        r.wr = R[0]
        r.A, r.B, r.C = R[1], R[2], R[3]
        r.rd = r.A | r.B | r.C
    elif op.startswith("v_"):
        r.cls = "valu"
        r.dpp = "_dpp" in op
        r.trans = op.startswith(TRANS)
        r.perm = op.startswith("v_permlane")
        r.lane = op.startswith(("v_readlane", "v_readfirstlane"))
        if r.perm:
            r.wr = R[0] | R[1]
            r.rd = set(r.wr)
        else:
            r.wr = set(R[0])
            r.rd = allb(R[1:])
            if "_co_" in op or op.startswith("v_div_scale"):
                r.wr |= R[1]
                r.rd = allb(R[2:])
            if r.dpp or op.startswith(RMW_DST):
                r.rd |= R[0]
    elif op.startswith(("buffer_", "global_")):
        r.cls = "vmem"
        if "_load" in op and " lds" not in t and "load_lds" not in op:
            r.wr = R[0]
            r.rd = allb(R[1:])
        elif "atomic" in op and " sc0" in t:
            r.wr = R[0]
            r.rd = allb(R)
        else:
            r.rd = allb(R)
            if op.endswith(("dwordx3", "dwordx4")) and "store" in op:
                r.wide = True
                r.data = R[1] if op.startswith("global_") else R[0]
    elif op.startswith("ds_"):
        r.cls = "ds"
        if op.startswith(("ds_read", "ds_bpermute", "ds_permute", "ds_swizzle")):
            r.wr = R[0]
            r.rd = allb(R[1:])
        else:
            r.rd = allb(R)
    elif op.startswith("s_"):
        r.cls = "salu"
        if op.startswith(("s_cmp", "s_bitcmp", "s_waitcnt", "s_barrier", "s_cbranch", "s_branch", "s_endpgm", "s_sleep", "s_setprio")):
            r.rd = allb(R)
        else:
            r.wr = set(R[0]) if R else set()
            r.rd = allb(R[1:])
            if "saveexec" in op:
                r.wr |= {("exec", 0)}
    else:
        raise ValueError(text)
    return r


XDL_OUT = {2: 5, 4: 8, 8: 12}
XDL_C_OVERLAP = {2: 4, 4: 6, 8: 10}
XDL_C_WAR = {2: 1, 4: 3, 8: 7}
isvec = lambda s: {x for x in s if x[0] in "va" and x[0] != "vcc"}
issca = lambda s: {x for x in s if x[0] in ("s", "vcc")}


def required(p, c):
    n = 0
    if p.cls == "valu":
        wv, ws = isvec(p.wr), issca(p.wr)
        if c.cls == "mfma" and wv & c.rd:
            n = max(n, 2)
        if c.cls == "valu":
            if (c.dpp or c.perm) and wv & c.rd:
                n = max(n, 2)
            if c.lane and wv & c.rd:
                n = max(n, 1)
            if p.trans and wv & c.rd:
                n = max(n, 1)
            if ws & c.rd:
                n = max(n, 4 if c.lane else 2)
        if c.cls == "vmem" and ws & c.rd:
            n = max(n, 5)
        if c.cls == "salu" and ws & c.rd:
            n = max(n, 2)
        if ("exec", 0) in p.wr and c.cls in ("valu", "mfma"):
            n = max(n, 5)
    elif p.cls == "mfma":
        if c.cls == "mfma":
            if p.wr & (c.A | c.B):
                n = max(n, XDL_OUT[p.passes])
            if p.wr & c.C:
                same = p.wr == c.C and p.passes == c.passes
                n = max(n, (2 if p.passes == 2 else 0) if same else XDL_C_OVERLAP[p.passes])
            elif p.wr & c.wr:
                n = max(n, XDL_C_OVERLAP[p.passes])
        elif c.cls in ("valu", "vmem", "ds"):
            if p.wr & (c.rd | c.wr):
                n = max(n, XDL_OUT[p.passes])
            if c.cls == "valu" and p.C & c.wr:
                n = max(n, XDL_C_WAR[p.passes])
    elif p.cls == "vmem" and p.wide:
        if p.data & c.wr:
            n = max(n, 2)
    elif p.cls == "salu":
        if ("m0", 0) in p.wr and c.cls in ("vmem", "ds"):
            n = max(n, 1)
    return n


class Emit:
    def __init__(self):
        self.lines = []
        self.hist = []
        self.vq, self.vdone = [], 0
        self.lq, self.ldone = [], 0
        self.nops = 0
        self.count = 0

    def _push(self, text, rec):
        self.lines.append("    " + text)
        self.hist.append(rec)
        self.count += 1
        if len(self.hist) > 32:
            self.hist.pop(0)

    def I(self, text):
        for line in text.split("\n"):
            line = line.strip()
            if not line:
                continue
            c = parse(line)
            pad, d = 0, 0
            for p in reversed(self.hist):
                pad = max(pad, required(p, c) - d)
                d += p.states
                if d > 24:
                    break
            while pad > 0:
                k = min(pad, 16)
                self._push(f"s_nop {k-1}", parse(f"s_nop {k-1}"))
                self.nops += k
                pad -= k
            self._push(line, c)

    def label(self, name):
        self.lines.append(name + ":")

    def skip_begin(self):
        self._skip = self.count

    def skip_end(self, name):
        n = self.count - self._skip
        for r in self.hist[-n:] if n else []:
            r.states = 0
        self.label(name)

    def comment(self, text):
        self.lines.append("    ; " + text)

    def fence(self, n=12):
        self.I(f"s_nop {n-1}")

    def vm(self, text, tag):
        self.I(text)
        self.vq.append(tag)
        assert len(self.vq) - self.vdone <= 63, "more than 63 vector-memory operations in flight"

    def vm_done(self, tag):
        return self.vq.index(tag) < self.vdone

    def vm_issued(self, tag):
        return tag in self.vq

    def vm_need(self, tag):
        i = self.vq.index(tag)
        if i >= self.vdone:
            self.I(f"s_waitcnt vmcnt({len(self.vq) - 1 - i})")
            self.vdone = i + 1

    def vm_all(self):
        self.I("s_waitcnt vmcnt(0)")
        self.vdone = len(self.vq)

    def ds(self, text, tag=None):
        self.I(text)
        self.lq.append(tag)
        assert len(self.lq) - self.ldone <= 15

    def ds_need(self, tag):
        i = self.lq.index(tag)
        if i >= self.ldone:
            self.I(f"s_waitcnt lgkmcnt({len(self.lq) - 1 - i})")
            self.ldone = i + 1

    def ds_all(self):
        self.I("s_waitcnt lgkmcnt(0)")
        self.ldone = len(self.lq)

    def text(self):
        return "\n".join(self.lines) + "\n"
```

```python
import re
import sys
from emit import Emit

NAME = "parallel_sum__mha_block_cached__mixer_token_mlp__decode_kernel"
HEADER = open("parallel_sum__mha_block_cached__mixer_token_mlp__decode.s.ref").read().split("; Override launch")[0]

LOG2E = "0x3fb8aa3b"
SCALE = "0x3db504f3"
EPS = "0x3727c5ac"
INV512 = "0x3b000000"
GELU_C0 = "0xc0135761"
GELU_C1 = "0xbdd2d3e8"
HI = "0xffff0000"
FULL = "row_mask:0xf bank_mask:0xf"

WS_Y, WS_ML, WS_B = 0, 0x80000, 0x81000
L_QP, L_OP, L_ML, L_FIN, LDS_BYTES = 0, 2048, 4096, 4224, 4608

V_LANE, V_KOFF, V_VOFF, V_WQOFF, V_WOOFF, V_M0, V_M1, V_T0 = range(8)
V_B, V_D, V_S, V_A, V_O = 8, 24, 40, 56, 72
V_MAX, V_L, V_R0, V_R1 = 80, 81, 82, 83
V_X8, V_E = 84, 88
V_W1, V_B1, V_W2 = 96, 104, 112
V_XA0, V_XA1, V_XC, V_T1, V_T2, V_T3, V_YOFF, V_FLAG = range(120, 128)
V_W = 128
RING = 64

S_WAVE, S_X, S_K, S_V, S_WQ, S_WO, S_W1, S_B1, S_W2, S_B2, S_OUT, S_DBG, S_WS = 3, 4, 6, 8, 10, 12, 16, 18, 20, 22, 24, 26, 28
S_SRDK, S_SRDV, S_SRDQ, S_SRDO = 32, 36, 40, 44
S_HEAD, S_CC, S_P, S_BASE, S_SOFF, S_ROT, S_SOFF2, S_T0, S_T1, S_SPIN = range(48, 58)
S_STAMP = 64

v = lambda a, n=1: f"v{a}" if n == 1 else f"v[{a}:{a+n-1}]"
a_ = lambda a, n=4: f"a[{a}:{a+n-1}]"
s = lambda a, n=1: f"s{a}" if n == 1 else f"s[{a}:{a+n-1}]"


def gen(bits="r0r1n0n1w0w1c0n2n3n4c1n5n6c2n7", depth=5, depth_k=None, depth_p=None, wpol="nt", budget=12, budget2=5,
        wq_every=1, wo_start=96, wo_every=4, clear_slot=12, b_slot=56, flag_check=470, diag=False, ncons=32):
    sym = re.findall(r"[a-z]\d", bits)
    assert len(sym) == 15 and sym[:2] == ["r0", "r1"]
    pos = {x: 8 + i for i, x in enumerate(sym)}
    naddr = lambda n: sum(((n >> i) & 1) << pos[f"n{i}"] for i in range(8))
    depth_k = depth_k or depth
    depth_p = depth_p or depth_k
    E = Emit()
    I = E.I
    stamps = [0]

    def stamp():
        if diag:
            E.ds_all()
            I(f"s_memrealtime {s(S_STAMP + 2 * stamps[0], 2)}\ns_waitcnt lgkmcnt(0)")
            stamps[0] += 1

    def rb(d, x):
        return [f"v_cvt_pk_bf16_f32 {v(d)}, {v(x)}, {v(x)}", f"v_and_b32 {v(d)}, {HI}, {v(d)}"]

    def rb2(d0, d1, x0, x1, t):
        return [f"v_cvt_pk_bf16_f32 {v(t)}, {v(x0)}, {v(x1)}", f"v_lshlrev_b32 {v(d0)}, 16, {v(t)}", f"v_and_b32 {v(d1)}, {HI}, {v(t)}"]

    def allreduce(op, r, t):
        out = [f"{op}_dpp {v(r)}, {v(r)}, {v(r)} {m} {FULL}" for m in ("quad_perm:[1,0,3,2]", "quad_perm:[2,3,0,1]", "row_half_mirror", "row_mirror")]
        for sw in ("v_permlane16_swap_b32", "v_permlane32_swap_b32"):
            out += [f"v_mov_b32 {v(t)}, {v(r)}", f"{sw} {v(r)}, {v(t)}", f"{op} {v(r)}, {v(r)}, {v(t)}"]
        return out

    def fold8(o):
        out = [f"v_permlane32_swap_b32 {v(o+e)}, {v(o+e+4)}" for e in range(4)]
        out += [f"v_add_f32 {v(o+e)}, {v(o+e)}, {v(o+e+4)}" for e in range(4)]
        out += [f"v_permlane16_swap_b32 {v(o+e)}, {v(o+e+2)}" for e in range(2)]
        out += [f"v_add_f32 {v(o+e)}, {v(o+e)}, {v(o+e+2)}" for e in range(2)]
        return out

    def diag_operands(dst, pp):
        out = []
        for m in range(4):
            for k, msk in enumerate((V_M0, V_M1)):
                out.append(f"v_and_b32_dpp {v(dst+2*m+k)}, {v(pp)}, {v(msk)} quad_perm:[{m},{m},{m},{m}] {FULL}")
        return out

    def scale_rows(acc, aop, b_lo, b_hi, u, first):
        c0, c1 = ("0", "0") if first else (v(acc, 4), v(acc + 4, 4))
        return [f"v_mfma_f32_4x4x4_16b_bf16 {v(acc,4)}, {v(aop,2)}, {b_lo}, {c0} cbsz:2 abid:{u}",
                f"v_mfma_f32_4x4x4_16b_bf16 {v(acc+4,4)}, {v(aop,2)}, {b_hi}, {c1} cbsz:2 abid:{u}"]

    def ln_stats(mean_b, rden, t, t2):
        e = V_E
        out = [f"v_add_f32 {v(mean_b)}, {v(e)}, {v(e+1)}", f"v_add_f32 {v(t)}, {v(e+2)}, {v(e+3)}",
               f"v_add_f32 {v(rden)}, {v(e+4)}, {v(e+5)}", f"v_add_f32 {v(t2)}, {v(e+6)}, {v(e+7)}",
               f"v_add_f32 {v(mean_b)}, {v(mean_b)}, {v(t)}", f"v_add_f32 {v(rden)}, {v(rden)}, {v(t2)}",
               f"v_add_f32 {v(mean_b)}, {v(mean_b)}, {v(rden)}"]
        out += allreduce("v_add_f32", mean_b, t)
        out += [f"v_mul_f32 {v(mean_b)}, {INV512}, {v(mean_b)}"]
        for k in range(8):
            out += [f"v_sub_f32 {v(t)}, {v(e+k)}, {v(mean_b)}",
                    f"v_mul_f32 {v(rden)}, {v(t)}, {v(t)}" if k == 0 else f"v_fmac_f32 {v(rden)}, {v(t)}, {v(t)}"]
        out += allreduce("v_add_f32", rden, t)
        out += [f"v_mul_f32 {v(rden)}, {INV512}, {v(rden)}"]
        out += rb2(mean_b, rden, mean_b, rden, t)
        out += [f"v_add_f32 {v(rden)}, {EPS}, {v(rden)}"] + rb(rden, rden)
        out += [f"v_sqrt_f32 {v(rden)}, {v(rden)}"] + rb(rden, rden) + [f"v_rcp_f32 {v(rden)}, {v(rden)}"]
        return out

    def ln_apply2(d0, d1, mean_b, rden, t):
        out = [f"v_sub_f32 {v(d0)}, {v(d0)}, {v(mean_b)}", f"v_sub_f32 {v(d1)}, {v(d1)}, {v(mean_b)}"]
        out += rb2(d0, d1, d0, d1, t)
        out += [f"v_mul_f32 {v(d0)}, {v(d0)}, {v(rden)}", f"v_mul_f32 {v(d1)}, {v(d1)}, {v(rden)}"]
        out += rb2(d0, d1, d0, d1, t)
        return out

    I(f"s_cmp_ge_u32 s2, 256\ns_cbranch_scc1 L_end")
    I(f"s_load_dwordx16 s[4:19], s[0:1], 0\ns_load_dwordx8 s[20:27], s[0:1], 64\ns_load_dwordx2 s[28:29], s[0:1], 96")
    if diag:
        I(f"s_memrealtime {s(S_STAMP, 2)}")
        stamps[0] = 1
    I(f"v_lshrrev_b32 {v(V_T0)}, 6, v0\nv_and_b32 v0, 63, v0\nv_readfirstlane_b32 {s(S_WAVE)}, {v(V_T0)}")
    I(f"s_and_b32 {s(S_T0)}, s2, 7\ns_lshl_b32 {s(S_T0)}, {s(S_T0)}, 2\ns_lshr_b32 {s(S_HEAD)}, s2, 6\ns_or_b32 {s(S_HEAD)}, {s(S_HEAD)}, {s(S_T0)}")
    I(f"s_lshr_b32 {s(S_CC)}, s2, 3\ns_and_b32 {s(S_CC)}, {s(S_CC)}, 7")
    I(f"s_lshl_b32 {s(S_P)}, {s(S_HEAD)}, 3\ns_or_b32 {s(S_P)}, {s(S_P)}, {s(S_CC)}")
    I(f"s_mov_b32 {s(S_BASE)}, 0")
    for src, nb, nm in ((S_WAVE, 2, "w"), (S_CC, 3, "c")):
        for b in range(nb):
            I(f"s_bfe_u32 {s(S_T0)}, {s(src)}, {b | (1 << 16)}\ns_lshl_b32 {s(S_T0)}, {s(S_T0)}, {pos[nm + str(b)]}\ns_or_b32 {s(S_BASE)}, {s(S_BASE)}, {s(S_T0)}")
    c, g = V_T1, V_T2
    I(f"v_and_b32 {v(c)}, 15, v0\nv_lshrrev_b32 {v(g)}, 4, v0")
    I(f"v_lshlrev_b32 {v(V_KOFF)}, 6, {v(c)}\nv_lshl_or_b32 {v(V_KOFF)}, {v(g)}, 4, {v(V_KOFF)}\nv_or_b32 {v(V_KOFF)}, {s(S_BASE)}, {v(V_KOFF)}")
    I(f"v_lshlrev_b32 {v(V_VOFF)}, 4, v0\nv_or_b32 {v(V_VOFF)}, {s(S_BASE)}, {v(V_VOFF)}")
    I(f"s_lshl_b32 {s(S_T0)}, {s(S_WAVE)}, 20\ns_lshl_b32 {s(S_ROT)}, {s(S_CC)}, 17")
    I(f"v_lshlrev_b32 {v(V_WQOFF)}, 13, {v(g)}\nv_lshl_or_b32 {v(V_WQOFF)}, {v(c)}, 4, {v(V_WQOFF)}\nv_or_b32 {v(V_WQOFF)}, {s(S_T0)}, {v(V_WQOFF)}")
    I(f"s_lshl_b32 {s(S_T0)}, {s(S_WAVE)}, 8")
    I(f"v_lshlrev_b32 {v(V_WOOFF)}, 10, {v(g)}\nv_lshl_or_b32 {v(V_WOOFF)}, {v(c)}, 4, {v(V_WOOFF)}\nv_or_b32 {v(V_WOOFF)}, {s(S_T0)}, {v(V_WOOFF)}")
    I(f"s_lshl_b32 {s(S_T0)}, {s(S_CC)}, 2\ns_lshl_b32 {s(S_T1)}, {s(S_WAVE)}, 8")
    I(f"v_xor_b32 {v(V_XA0)}, {s(S_T0)}, {v(c)}\nv_xor_b32 {v(V_XA1)}, 16, {v(V_XA0)}")
    for r in (V_XA0, V_XA1):
        I(f"v_lshlrev_b32 {v(r)}, 3, {v(r)}\nv_lshl_or_b32 {v(r)}, {v(g)}, 1, {v(r)}\nv_or_b32 {v(r)}, {s(S_T1)}, {v(r)}")
    I(f"s_lshl_b32 {s(S_T0)}, s2, 1\ns_lshr_b32 {s(S_T1)}, {s(S_WAVE)}, 1\ns_add_u32 {s(S_T0)}, {s(S_T0)}, {s(S_T1)}\ns_lshl_b32 {s(S_T0)}, {s(S_T0)}, 1")
    I(f"v_mov_b32 {v(V_XC)}, {s(S_T0)}\nv_lshlrev_b32 {v(V_X8)}, 4, v0")
    I(f"s_lshl_b32 {s(S_T0)}, {s(S_P)}, 11\ns_lshl_b32 {s(S_T1)}, {s(S_WAVE)}, 9\ns_or_b32 {s(S_T0)}, {s(S_T0)}, {s(S_T1)}")
    I(f"v_lshlrev_b32 {v(V_YOFF)}, 5, {v(c)}\nv_lshl_or_b32 {v(V_YOFF)}, {v(g)}, 3, {v(V_YOFF)}\nv_or_b32 {v(V_YOFF)}, {s(S_T0)}, {v(V_YOFF)}")
    I(f"v_and_b32 {v(V_T0)}, 1, v0\nv_lshlrev_b32 {v(V_T0)}, 4, {v(V_T0)}\nv_mov_b32 {v(V_T3)}, 0xffff\nv_lshlrev_b32 {v(V_T0)}, {v(V_T0)}, {v(V_T3)}")
    I(f"v_and_b32 {v(V_T3)}, 2, v0\nv_cmp_eq_u32 vcc, 0, {v(V_T3)}\nv_cndmask_b32 {v(V_M0)}, 0, {v(V_T0)}, vcc\nv_cndmask_b32 {v(V_M1)}, {v(V_T0)}, 0, vcc")
    I(f"s_lshl_b32 {s(S_T0)}, {s(S_HEAD)}, 23\ns_lshl_b32 {s(S_T1)}, {s(S_HEAD)}, 8\ns_lshl_b32 {s(S_SOFF2)}, {s(S_HEAD)}, 17")
    I("s_waitcnt lgkmcnt(0)")
    E.vm(f"global_load_dwordx4 {v(V_X8,4)}, {v(V_X8)}, {s(S_X,2)}", "x8")
    for r in (V_XA0, V_XA1, V_XC):
        E.vm(f"global_load_ushort {v(r)}, {v(r)}, {s(S_X,2)}", f"x{r}")
    for srd, ptr, off, size in ((S_SRDK, S_K, S_T0, 0x800000), (S_SRDV, S_V, S_T0, 0x800000), (S_SRDQ, S_WQ, S_T1, 0x400000 - 31 * 256), (S_SRDO, S_WO, S_SOFF2, 0x20000)):
        I(f"s_add_u32 {s(srd)}, {s(ptr)}, {s(off)}\ns_addc_u32 {s(srd+1)}, {s(ptr+1)}, 0\ns_mov_b32 {s(srd+2)}, {size}\ns_mov_b32 {s(srd+3)}, 0x20000")

    consumed = set()

    def t_ln1():
        yield ("vm", f"x{V_XC}")
        for k in range(4):
            yield f"v_lshlrev_b32 {v(V_E+2*k)}, 16, {v(V_X8+k)}"
            yield f"v_and_b32 {v(V_E+2*k+1)}, {HI}, {v(V_X8+k)}"
        for r in (V_XA0, V_XA1, V_XC):
            yield f"v_lshlrev_b32 {v(r)}, 16, {v(r)}"
        yield from ln_stats(V_T1, V_T2, V_T0, V_T3)
        yield from ln_apply2(V_XA0, V_XA1, V_T1, V_T2, V_T0)
        for b, r in enumerate((V_XA0, V_XA1)):
            yield f"v_cvt_pk_bf16_f32 {v(r)}, {v(r)}, {v(r)}"
            yield from diag_operands(V_A + 8 * b, r)
        for k in range(4):
            yield from ln_apply2(V_E + 2 * k, V_E + 2 * k + 1, V_T1, V_T2, V_T0)
        yield from ln_apply2(V_XC, V_XA0, V_T1, V_T2, V_T0)
        yield ("consumed", "ln1")

    def t_q():
        for j in range(32):
            yield ("vm", f"wq{j}")
            w = V_W + 4 * j
            yield from scale_rows(V_O, V_A + 8 * (j >> 4) + 2 * (j & 3), v(w, 2), v(w + 2, 2), (j >> 2) & 3, j == 0)
        yield from fold8(V_O)
        yield f"v_and_b32 {v(V_T0)}, 0x7ff, {v(V_YOFF)}"
        yield ("ds", f"ds_write_b64 {v(V_T0)}, {v(V_O,2)} offset:{L_QP}", "qw")
        yield f"v_bfe_u32 {v(V_T1)}, v0, 2, 2"
        yield f"v_lshrrev_b32 {v(V_T2)}, 4, v0"
        yield f"v_lshlrev_b32 {v(V_T1)}, 7, {v(V_T1)}"
        yield f"v_lshl_or_b32 {v(V_T1)}, {v(V_T2)}, 5, {v(V_T1)}"
        yield ("vm", "clr_b")
        yield ("dsneed", "qw")
        yield "s_barrier"
        for w in range(4):
            for hf in range(2):
                yield ("ds", f"ds_read_b128 {v(V_D + 8*w + 4*hf, 4)}, {v(V_T1)} offset:{L_QP + 512*w + 16*hf}", f"qr{w}{hf}")
        yield ("fn", flag_store)
        yield ("dsneed", "qr11")
        for k in range(8):
            yield f"v_add_f32 {v(V_D+k)}, {v(V_D+k)}, {v(V_D+8+k)}"
        yield ("dsneed", "qr31")
        for k in range(8):
            yield f"v_add_f32 {v(V_D+16+k)}, {v(V_D+16+k)}, {v(V_D+24+k)}"
        for k in range(8):
            yield f"v_add_f32 {v(V_D+k)}, {v(V_D+k)}, {v(V_D+16+k)}"
        for k in range(4):
            yield f"v_cvt_pk_bf16_f32 {v(V_D+8+k)}, {v(V_D+2*k)}, {v(V_D+2*k+1)}"
        yield f"v_and_b32 {v(V_T0)}, 3, v0"
        for m in range(4):
            yield f"v_cmp_eq_u32 vcc, {m}, {v(V_T0)}"
            for k in range(4):
                yield f"v_cndmask_b32 {v(V_B+4*m+k)}, 0, {v(V_D+8+k)}, vcc"
        yield ("fn", stamp)

    def flag_store():
        I(f"s_cmp_lg_u32 {s(S_WAVE)}, 0\ns_cbranch_scc1 L_noflag")
        E.skip_begin()
        I(f"v_mov_b32 {v(V_T2)}, s2\nv_mov_b32 {v(V_T3)}, 1\ns_mov_b64 exec, 1")
        I(f"global_store_byte {v(V_T2)}, {v(V_T3)}, {s(S_DBG,2)} sc1\ns_mov_b64 exec, -1")
        E.skip_end("L_noflag")

    def score_op(j):
        blk, u, t = j >> 4, (j >> 2) & 3, j & 3
        r = V_R0 + (blk & 1)
        d = V_D + 4 * ((j >> 2) & 3) + t
        rot = (4 * (u - t)) % 16
        mod = (f"row_ror:{rot}" if rot else "quad_perm:[0,1,2,3]") + f" row_mask:0xf bank_mask:{1 << u:#x}"
        yield f"v_mov_b32_dpp {v(r)}, {v(d)} {mod}" if t == 0 else f"v_add_f32_dpp {v(r)}, {v(d)}, {v(r)} {mod}"
        if j & 15 == 15:
            sreg = V_S + blk
            yield from rb(sreg, r)
            yield f"v_mul_f32 {v(sreg)}, {SCALE}, {v(sreg)}"
            yield from rb(sreg, sreg)
            yield f"v_mov_b32 {v(V_MAX)}, {v(sreg)}" if blk == 0 else f"v_max_f32 {v(V_MAX)}, {v(V_MAX)}, {v(sreg)}"

    def t_k():
        LAGD = 6
        for i in range(256):
            yield ("vm", f"st{i}")
            d = V_D + 4 * ((i >> 2) & 3)
            yield f"v_mfma_f32_16x16x32_bf16 {v(d,4)}, {a_(4*(i % RING))}, {v(V_B+4*(i&3),4)}, {'0' if i & 3 == 0 else v(d,4)}"
            yield ("consumed", i)
            if i >= LAGD:
                yield from score_op(i - LAGD)
        for j in range(256 - LAGD, 256):
            yield from score_op(j)
        yield from allreduce("v_max_f32", V_MAX, V_T0)
        yield ("fn", stamp)

    def p_prep(b):
        yield f"v_sub_f32 {v(V_R0)}, {v(V_S+b)}, {v(V_MAX)}"
        yield f"v_mul_f32 {v(V_R0)}, {LOG2E}, {v(V_R0)}"
        yield f"v_exp_f32 {v(V_R0)}, {v(V_R0)}"
        yield f"v_cvt_pk_bf16_f32 {v(V_R1)}, {v(V_R0)}, {v(V_R0)}"
        yield f"v_mov_b32 {v(V_L)}, {v(V_R0)}" if b == 0 else f"v_add_f32 {v(V_L)}, {v(V_L)}, {v(V_R0)}"
        yield from diag_operands(V_A + 8 * (b & 1), V_R1)

    def l_publish():
        yield from allreduce("v_add_f32", V_L, V_R0)
        yield f"v_mov_b32 {v(V_R0)}, {s(S_WAVE)}"
        yield f"v_lshlrev_b32 {v(V_R0)}, 3, {v(V_R0)}"
        yield ("ds", f"ds_write_b64 {v(V_R0)}, {v(V_MAX,2)} offset:{L_ML}", "mlw")

    def t_v():
        yield from p_prep(0)
        for b in range(16):
            side = p_prep(b + 1) if b < 15 else l_publish()
            for n in range(16):
                i = 256 + 16 * b + n
                yield ("vm", f"st{i}")
                r = 4 * (i % RING)
                yield from scale_rows(V_O, V_A + 8 * (b & 1) + 2 * (n & 3), a_(r, 2), a_(r + 2, 2), n >> 2, i == 256)
                yield ("consumed", i)
                for _ in range(2 if n < 8 else 1):
                    x = next(side, None)
                    if x is not None:
                        yield x
            yield from side

    def t_clear():
        yield f"v_mov_b32 {v(V_R0)}, -1"
        yield f"v_mov_b32 {v(V_R1)}, -1"
        yield ("vmi", f"global_store_dwordx2 {v(V_YOFF)}, {v(V_R0,2)}, {s(S_WS,2)} sc1", "clr_y")
        yield f"s_lshl_b32 {s(S_T0)}, {s(S_P)}, 3"
        yield f"s_add_u32 {s(S_T0)}, {s(S_T0)}, {WS_ML}"
        yield f"v_mov_b32 {v(V_MAX)}, {s(S_T0)}"
        yield f"s_lshl_b32 {s(S_T0)}, s2, 2"
        yield f"s_add_u32 {s(S_T0)}, {s(S_T0)}, {s(S_WAVE)}"
        yield f"s_lshl_b32 {s(S_T0)}, {s(S_T0)}, 2"
        yield f"s_add_u32 {s(S_T0)}, {s(S_T0)}, {WS_B}"
        yield f"v_mov_b32 {v(V_FLAG)}, {s(S_T0)}"
        yield ("fn", clear_small)

    def clear_small():
        I("s_mov_b64 exec, 1")
        E.vm(f"global_store_dwordx2 {v(V_MAX)}, {v(V_R0,2)}, {s(S_WS,2)} sc1", "clr_ml")
        E.vm(f"global_store_dword {v(V_FLAG)}, {v(V_R0)}, {s(S_WS,2)} sc1", "clr_b")
        I("s_mov_b64 exec, -1")

    def t_b():
        t0, t1, t2, t3 = V_X8, V_X8 + 1, V_X8 + 2, V_X8 + 3
        assert "ln1" in consumed
        yield f"s_and_b32 {s(S_T0)}, {s(S_WAVE)}, 1"
        yield f"s_mul_i32 {s(S_T0)}, {s(S_T0)}, 1792"
        yield f"v_mul_u32_u24 {v(t0)}, 28, v0"
        yield f"v_add_u32 {v(t0)}, {s(S_T0)}, {v(t0)}"
        for r, p in ((V_W1, S_W1), (V_B1, S_B1), (V_W2, S_W2)):
            yield ("vmi", f"global_load_dwordx4 {v(r,4)}, {v(t0)}, {s(p,2)}", f"bw{r}a")
            yield ("vmi", f"global_load_dwordx3 {v(r+4,3)}, {v(t0)}, {s(p,2)} offset:16", f"bw{r}b")
        yield from ln_stats(t1, t2, t0, t3)
        yield from ln_apply2(V_XC, V_XA0, t1, t2, t0)
        yield ("vm", f"bw{V_W2}b")
        u0, u1, z0, z1, acc = V_E, V_E + 1, V_E + 2, V_E + 3, V_XA1
        for k in range(7):
            yield f"v_lshlrev_b32 {v(u0)}, 16, {v(V_W1+k)}"
            yield f"v_and_b32 {v(u1)}, {HI}, {v(V_W1+k)}"
            yield f"v_mul_f32 {v(u0)}, {v(V_XC)}, {v(u0)}"
            yield f"v_mul_f32 {v(u1)}, {v(V_XC)}, {v(u1)}"
            yield from rb2(u0, u1, u0, u1, t0)
            yield f"v_lshlrev_b32 {v(z0)}, 16, {v(V_B1+k)}"
            yield f"v_and_b32 {v(z1)}, {HI}, {v(V_B1+k)}"
            yield f"v_add_f32 {v(u0)}, {v(u0)}, {v(z0)}"
            yield f"v_add_f32 {v(u1)}, {v(u1)}, {v(z1)}"
            yield from rb2(u0, u1, u0, u1, t0)
            yield f"v_mov_b32 {v(t1)}, {GELU_C0}"
            for u, z in ((u0, z0), (u1, z1)):
                yield f"v_mul_f32 {v(z)}, {v(u)}, {v(u)}"
            for u, z in ((u0, z0), (u1, z1)):
                yield f"v_fmamk_f32 {v(z)}, {v(z)}, {GELU_C1}, {v(t1)}"
            for u, z in ((u0, z0), (u1, z1)):
                yield f"v_mul_f32 {v(z)}, {v(z)}, {v(u)}"
            for u, z in ((u0, z0), (u1, z1)):
                yield f"v_exp_f32 {v(z)}, {v(z)}"
            for u, z in ((u0, z0), (u1, z1)):
                yield f"v_add_f32 {v(z)}, 1.0, {v(z)}"
            for u, z in ((u0, z0), (u1, z1)):
                yield f"v_rcp_f32 {v(z)}, {v(z)}"
            for u, z in ((u0, z0), (u1, z1)):
                yield f"v_mul_f32 {v(u)}, {v(u)}, {v(z)}"
            yield from rb2(u0, u1, u0, u1, t0)
            yield f"v_lshlrev_b32 {v(z0)}, 16, {v(V_W2+k)}"
            yield f"v_and_b32 {v(z1)}, {HI}, {v(V_W2+k)}"
            yield f"v_mul_f32 {v(acc)}, {v(u0)}, {v(z0)}" if k == 0 else f"v_fmac_f32 {v(acc)}, {v(u0)}, {v(z0)}"
            yield f"v_fmac_f32 {v(acc)}, {v(u1)}, {v(z1)}"
        yield from allreduce("v_add_f32", acc, t0)
        yield f"v_min_u32 {v(acc)}, -2, {v(acc)}"
        yield ("fn", b_store)

    def b_store():
        I("s_mov_b64 exec, 1")
        E.vm(f"global_store_dword {v(V_FLAG)}, {v(V_XA1)}, {s(S_WS,2)} sc1", "bst")
        I("s_mov_b64 exec, -1")

    def flag_load():
        I(f"v_lshlrev_b32 {v(V_T3)}, 2, v0")
        E.vm(f"global_load_dword {v(V_FLAG)}, {v(V_T3)}, {s(S_DBG,2)} sc1", "flags")

    def chain(*gs):
        for x in gs:
            yield from x

    class Q:
        def __init__(self, g):
            self.g, self.cur, self.done = g, None, False

        def run(self, n, force=False):
            while n > 0 and not self.done:
                if self.cur is None:
                    self.cur = next(self.g, None)
                    if self.cur is None:
                        self.done = True
                        return
                x = self.cur
                if isinstance(x, str):
                    I(x); n -= 1
                elif x[0] == "vm":
                    if not (E.vm_issued(x[1]) and E.vm_done(x[1])):
                        if not force:
                            return
                        E.vm_need(x[1])
                elif x[0] == "vmi":
                    E.vm(x[1], x[2]); n -= 1
                elif x[0] == "ds":
                    E.ds(x[1], x[2]); n -= 1
                elif x[0] == "dsneed":
                    E.ds_need(x[1])
                elif x[0] == "fn":
                    x[1](); n -= 1
                elif x[0] == "consumed":
                    consumed.add(x[1])
                elif x[0] == "slot":
                    if slot[0] < x[1]:
                        return
                self.cur = None

    slot = [0]
    main = Q(chain(t_ln1(), t_q(), t_k(), t_v()))
    side = Q(chain([("slot", clear_slot)], t_clear(), [("slot", b_slot)], t_b()))
    cur_soff = [None]
    nwq = nwo = 0
    q_done = lambda: "wq31" in E.vq and any(x in consumed for x in (0,))
    depth_at = lambda i: depth_p if i < 32 * wq_every + 4 else depth_k if i < 256 else depth

    for i in range(512):
        slot[0] = i
        if i % 16 == 0:
            E.comment(f"load slot {i}")
        d = depth_at(i)
        if i - d >= 0:
            E.vm_need(f"st{i-d}")
        assert i < RING or (i - RING) in consumed, f"ring slot of load {i - RING} reused before its consumer"
        ad = naddr(i & 255)
        if ad & ~4095 != cur_soff[0]:
            cur_soff[0] = ad & ~4095
            I(f"s_mov_b32 {s(S_SOFF)}, {cur_soff[0]:#x}")
        off, srd = (V_KOFF, S_SRDK) if i < 256 else (V_VOFF, S_SRDV)
        E.vm(f"buffer_load_dwordx4 {a_(4*(i % RING))}, {v(off)}, {s(srd,4)}, {s(S_SOFF)} offen offset:{ad & 4095} nt", f"st{i}")
        if nwq < 32 and i % wq_every == 0:
            I(f"s_xor_b32 {s(S_SOFF2)}, {s(S_ROT)}, {nwq << 15:#x}")
            E.vm(f"buffer_load_dwordx4 {v(V_W+4*nwq,4)}, {v(V_WQOFF)}, {s(S_SRDQ,4)}, {s(S_SOFF2)} offen {wpol}", f"wq{nwq}")
            nwq += 1
        if i >= wo_start and nwo < 32 and (i - wo_start) % wo_every == 0:
            assert q_done()
            I(f"s_mov_b32 {s(S_SOFF2)}, {nwo << 12:#x}")
            E.vm(f"buffer_load_dwordx4 {v(V_W+4*nwo,4)}, {v(V_WOOFF)}, {s(S_SRDO,4)}, {s(S_SOFF2)} offen {wpol}", f"wo{nwo}")
            nwo += 1
        if i == flag_check:
            assert side.done
            flag_load()
        main.run(budget)
        side.run(budget2)
    assert side.done and nwo == 32
    main.run(10 ** 9, force=True)
    stamp()

    for x in fold8(V_O):
        I(x)
    I(f"v_and_b32 {v(V_T0)}, 0x7ff, {v(V_YOFF)}")
    E.ds(f"ds_write_b64 {v(V_T0)}, {v(V_O,2)} offset:{L_OP}", "ow")
    I(f"v_and_b32 {v(V_T1)}, 15, v0\nv_lshrrev_b32 {v(V_T2)}, 4, v0\nv_lshlrev_b32 {v(V_T1)}, 4, {v(V_T1)}\nv_lshl_or_b32 {v(V_T1)}, {v(V_T2)}, 2, {v(V_T1)}")
    I(f"v_add_u32 {v(V_T1)}, {L_OP}, {v(V_T1)}\nv_mov_b32 {v(V_T2)}, 0")
    E.ds_all()
    I("s_barrier")
    ml, ov = V_S, V_S + 8
    E.ds(f"ds_read_b128 {v(ml,4)}, {v(V_T2)} offset:{L_ML}", "ml0")
    E.ds(f"ds_read_b128 {v(ml+4,4)}, {v(V_T2)} offset:{L_ML+16}", "ml1")
    for w in range(4):
        E.ds(f"ds_read2st64_b32 {v(ov+2*w,2)}, {v(V_T1)} offset0:{2*w} offset1:{2*w+1}", f"ov{w}")
    E.ds_need("ml1")
    I(f"v_max3_f32 {v(V_MAX)}, {v(ml)}, {v(ml+2)}, {v(ml+4)}\nv_max_f32 {v(V_MAX)}, {v(V_MAX)}, {v(ml+6)}")
    for op in ("v_sub_f32 {0}, {0}, " + v(V_MAX), f"v_mul_f32 {{0}}, {LOG2E}, {{0}}", "v_exp_f32 {0}, {0}"):
        for w in range(4):
            I(op.format(v(ml + 2 * w)))
    E.ds_need("ov3")
    for b in range(2):
        I(f"v_mul_f32 {v(V_R0+b)}, {v(ml)}, {v(ov+b)}")
    for w in range(1, 4):
        for b in range(2):
            I(f"v_fmac_f32 {v(V_R0+b)}, {v(ml+2*w)}, {v(ov+2*w+b)}")
    for b in range(2):
        I(f"v_cvt_pk_bf16_f32 {v(V_R0+b)}, {v(V_R0+b)}, {v(V_R0+b)}")
    I(f"v_mul_f32 {v(V_L)}, {v(ml)}, {v(ml+1)}")
    for x in diag_operands(V_A, V_R0):
        I(x)
    for w in range(1, 4):
        I(f"v_fmac_f32 {v(V_L)}, {v(ml+2*w)}, {v(ml+2*w+1)}")
    for x in diag_operands(V_A + 8, V_R1):
        I(x)
    I(f"s_lshl_b32 {s(S_T0)}, {s(S_P)}, 3\ns_add_u32 {s(S_T0)}, {s(S_T0)}, {WS_ML}")
    I(f"v_mov_b32 {v(V_T2)}, {s(S_T0)}\nv_min_u32 {v(V_MAX)}, -2, {v(V_MAX)}\nv_min_u32 {v(V_L)}, -2, {v(V_L)}")
    I(f"s_cmp_lg_u32 {s(S_WAVE)}, 0\ns_cbranch_scc1 L_noml")
    E.skip_begin()
    I("s_mov_b64 exec, 1")
    I(f"global_store_dwordx2 {v(V_T2)}, {v(V_MAX,2)}, {s(S_WS,2)} sc1\ns_mov_b64 exec, -1")
    E.skip_end("L_noml")
    E.vm_need("wo31")
    for j in range(32):
        w = V_W + 4 * j
        acc = V_O if j & 1 == 0 else V_D
        for x in scale_rows(acc, V_A + 8 * (j >> 4) + 2 * (j & 3), v(w, 2), v(w + 2, 2), (j >> 2) & 3, j < 2):
            I(x)
    for k in range(8):
        I(f"v_add_f32 {v(V_O+k)}, {v(V_O+k)}, {v(V_D+k)}")
    for x in fold8(V_O):
        I(x)
    I(f"v_min_u32 {v(V_O)}, -2, {v(V_O)}\nv_min_u32 {v(V_O+1)}, -2, {v(V_O+1)}")
    E.vm(f"global_store_dwordx2 {v(V_YOFF)}, {v(V_O,2)}, {s(S_WS,2)} sc1", "yst")
    stamp()
    I(f"s_cmp_ge_u32 s2, {ncons}\ns_cbranch_scc1 L_fin")

    yo, mo, bo, xo = V_E, V_E + 1, V_E + 2, V_E + 3
    Y, ML, BP, XV, B2 = V_W, V_W + 16, V_W + 24, V_W + 26, V_W + 27
    I(f"s_lshl_b32 {s(S_T0)}, {s(S_WAVE)}, 6\nv_and_b32 {v(V_T0)}, 60, v0\nv_or_b32 {v(V_T0)}, {s(S_T0)}, {v(V_T0)}")
    I(f"v_lshlrev_b32 {v(mo)}, 3, {v(V_T0)}\nv_add_u32 {v(mo)}, {WS_ML}, {v(mo)}")
    I(f"s_lshl_b32 {s(S_T0)}, s2, 6\ns_add_u32 {s(S_T0)}, {s(S_T0)}, 4096\nv_and_b32 {v(V_T1)}, 3, v0")
    I(f"v_lshlrev_b32 {v(yo)}, 11, {v(V_T0)}\nv_lshl_or_b32 {v(yo)}, {v(V_T1)}, 4, {v(yo)}\nv_add_u32 {v(yo)}, {s(S_T0)}, {v(yo)}")
    I(f"s_lshl_b32 {s(S_T0)}, s2, 4\nv_and_b32 {v(V_T2)}, 15, v0\nv_or_b32 {v(V_T2)}, {s(S_T0)}, {v(V_T2)}")
    I(f"v_lshlrev_b32 {v(bo)}, 3, {v(V_T2)}\nv_add_u32 {v(bo)}, {WS_B}, {v(bo)}\nv_lshlrev_b32 {v(xo)}, 1, {v(V_T2)}\nv_mov_b32 {v(V_T3)}, 0")
    E.vm(f"global_load_ushort {v(XV)}, {v(xo)}, {s(S_X,2)}", "xv")
    E.vm(f"global_load_ushort {v(B2)}, {v(V_T3)}, {s(S_B2,2)}", "b2")
    E.vm_need("flags")
    I(f"s_mov_b32 {s(S_SPIN)}, 0x100000\ns_mov_b32 {s(S_T1)}, 0x01010101\nv_lshlrev_b32 {v(V_T3)}, 2, v0")
    E.label("L_flagpoll")
    I(f"v_cmp_ne_u32 vcc, {s(S_T1)}, {v(V_FLAG)}\ns_nop 4\ns_cbranch_vccz L_flagok")
    I(f"global_load_dword {v(V_FLAG)}, {v(V_T3)}, {s(S_DBG,2)} sc1")
    I(f"s_sub_u32 {s(S_SPIN)}, {s(S_SPIN)}, 1\ns_waitcnt vmcnt(0)\ns_cmp_lg_u32 {s(S_SPIN)}, 0\ns_cbranch_scc1 L_flagpoll")
    E.label("L_flagok")
    I(f"s_mov_b32 {s(S_SPIN)}, 0x100000")
    E.label("L_poll")
    for hf in range(2):
        I(f"global_load_dwordx4 {v(ML+4*hf,4)}, {v(mo)}, {s(S_WS,2)} offset:{16*hf} sc1")
    for i in range(4):
        I(f"global_load_dwordx4 {v(Y+4*i,4)}, {v(yo)}, {s(S_WS,2)} offset:{2048*i-4096} sc1")
    I(f"global_load_dwordx2 {v(BP,2)}, {v(bo)}, {s(S_WS,2)} sc1")
    I(f"s_sub_u32 {s(S_SPIN)}, {s(S_SPIN)}, 1\ns_cmp_eq_u32 {s(S_SPIN)}, 0\ns_cbranch_scc1 L_polldone")
    I("s_waitcnt vmcnt(0)")
    for k in range(4):
        I(f"v_max3_u32 {v(V_S+k)}, {v(Y+6*k)}, {v(Y+6*k+1)}, {v(Y+6*k+2)}")
    for k in range(4):
        I(f"v_max3_u32 {v(V_S+k)}, {v(V_S+k)}, {v(Y+6*k+3)}, {v(Y+6*k+4)}")
    I(f"v_max3_u32 {v(V_S)}, {v(V_S)}, {v(Y+5)}, {v(Y+11)}\nv_max3_u32 {v(V_S+1)}, {v(V_S+1)}, {v(Y+17)}, {v(Y+23)}")
    I(f"v_max3_u32 {v(V_S+2)}, {v(V_S+2)}, {v(BP)}, {v(BP+1)}")
    I(f"v_max3_u32 {v(V_S)}, {v(V_S)}, {v(V_S+1)}, {v(V_S+3)}\nv_max_u32 {v(V_S)}, {v(V_S)}, {v(V_S+2)}")
    I(f"v_cmp_eq_u32 vcc, -1, {v(V_S)}\ns_and_b64 exec, exec, vcc\ns_cbranch_scc1 L_poll")
    E.label("L_polldone")
    I("s_mov_b64 exec, -1")
    E.vm_all()
    stamp()
    I(f"v_max3_f32 {v(V_MAX)}, {v(ML)}, {v(ML+2)}, {v(ML+4)}\nv_max_f32 {v(V_MAX)}, {v(V_MAX)}, {v(ML+6)}")
    I(f"v_max_f32_dpp {v(V_MAX)}, {v(V_MAX)}, {v(V_MAX)} row_half_mirror {FULL}")
    for op in ("v_sub_f32 {0}, {0}, " + v(V_MAX), f"v_mul_f32 {{0}}, {LOG2E}, {{0}}", "v_exp_f32 {0}, {0}"):
        for i in range(4):
            I(op.format(v(ML + 2 * i)))
    I(f"v_mul_f32 {v(V_L)}, {v(ML)}, {v(ML+1)}")
    for i in range(1, 4):
        I(f"v_fmac_f32 {v(V_L)}, {v(ML+2*i)}, {v(ML+2*i+1)}")
    for k in range(4):
        I(f"v_mul_f32 {v(V_O+k)}, {v(ML)}, {v(Y+k)}")
    I(f"v_add_f32_dpp {v(V_L)}, {v(V_L)}, {v(V_L)} row_half_mirror {FULL}")
    for i in range(1, 4):
        for k in range(4):
            I(f"v_fmac_f32 {v(V_O+k)}, {v(ML+2*i)}, {v(Y+4*i+k)}")
        if i == 1:
            I(f"v_rcp_f32 {v(V_L)}, {v(V_L)}")
    for k in range(4):
        I(f"v_mul_f32 {v(V_O+k)}, {v(V_O+k)}, {v(V_L)}")
    for rot in (8, 4):
        for k in range(4):
            I(f"v_add_f32_dpp {v(V_O+k)}, {v(V_O+k)}, {v(V_O+k)} row_ror:{rot} {FULL}")
    I(f"s_lshl_b32 {s(S_T0)}, {s(S_WAVE)}, 6\nv_lshrrev_b32 {v(V_T0)}, 4, v0\nv_lshlrev_b32 {v(V_T0)}, 2, {v(V_T0)}")
    for k in range(2):
        I(f"v_permlane32_swap_b32 {v(V_O+k)}, {v(V_O+k+2)}")
    for k in range(2):
        I(f"v_add_f32 {v(V_O+k)}, {v(V_O+k)}, {v(V_O+k+2)}")
    I(f"v_lshl_or_b32 {v(V_T0)}, {v(V_T1)}, 4, {v(V_T0)}\nv_or_b32 {v(V_T0)}, {s(S_T0)}, {v(V_T0)}")
    I(f"v_permlane16_swap_b32 {v(V_O)}, {v(V_O+1)}\nv_add_f32 {v(V_O)}, {v(V_O)}, {v(V_O+1)}")
    E.ds(f"ds_write_b32 {v(V_T0)}, {v(V_O)} offset:{L_FIN}", "fw")
    I(f"v_and_b32 {v(V_T2)}, 15, v0\nv_lshlrev_b32 {v(V_T2)}, 2, {v(V_T2)}\nv_add_u32 {v(V_T2)}, {L_FIN}, {v(V_T2)}")
    I(f"v_add_f32 {v(BP)}, {v(BP)}, {v(BP+1)}\nv_lshlrev_b32 {v(B2)}, 16, {v(B2)}\nv_lshlrev_b32 {v(XV)}, 16, {v(XV)}")
    for x in rb(BP, BP) + [f"v_add_f32 {v(BP)}, {v(BP)}, {v(B2)}"] + rb(BP, BP):
        I(x)
    E.ds_all()
    I("s_barrier")
    I(f"s_cmp_lg_u32 {s(S_WAVE)}, 0\ns_cbranch_scc1 L_fin")
    E.ds(f"ds_read2_b32 {v(V_O,2)}, {v(V_T2)} offset0:0 offset1:16", "f0")
    E.ds(f"ds_read2_b32 {v(V_O+2,2)}, {v(V_T2)} offset0:32 offset1:48", "f1")
    E.ds_all()
    I(f"v_add_f32 {v(V_O)}, {v(V_O)}, {v(V_O+1)}\nv_add_f32 {v(V_O+2)}, {v(V_O+2)}, {v(V_O+3)}\nv_add_f32 {v(V_O)}, {v(V_O)}, {v(V_O+2)}")
    for x in rb(V_O, V_O) + [f"v_add_f32 {v(V_O)}, {v(V_O)}, {v(XV)}"] + rb(V_O, V_O) + [f"v_add_f32 {v(V_O)}, {v(V_O)}, {v(BP)}",
                                                                                     f"v_cvt_pk_bf16_f32 {v(V_O)}, {v(V_O)}, {v(V_O)}"]:
        I(x)
    I(f"s_mov_b64 exec, 0xffff\nglobal_store_short {v(xo)}, {v(V_O)}, {s(S_OUT,2)}\ns_mov_b64 exec, -1")
    E.label("L_fin")
    if diag:
        I("s_waitcnt vmcnt(0)")
        I(f"s_memrealtime s[62:63]\ns_getreg_b32 {s(S_T1)}, hwreg(HW_REG_XCC_ID, 0, 4)\ns_waitcnt lgkmcnt(0)")
        I(f"s_lshl_b32 {s(S_T1)}, {s(S_T1)}, 28\ns_or_b32 s63, s63, {s(S_T1)}")
        I(f"s_lshl_b32 {s(S_T0)}, s2, 2\ns_add_u32 {s(S_T0)}, {s(S_T0)}, {s(S_WAVE)}\ns_lshl_b32 {s(S_T0)}, {s(S_T0)}, 6\ns_add_u32 {s(S_T0)}, {s(S_T0)}, 0x20000000")
        I(f"v_mov_b32 {v(V_T0)}, {s(S_T0)}\ns_mov_b64 exec, 1")
        order = [S_STAMP, 62] + [S_STAMP + 2 * k for k in range(1, 7)]
        for k in range(4):
            for j in range(2):
                I(f"v_mov_b32 {v(V_W+2*j)}, {s(order[2*k+j])}\nv_mov_b32 {v(V_W+2*j+1)}, {s(order[2*k+j]+1)}")
            I(f"global_store_dwordx4 {v(V_T0)}, {v(V_W,4)}, {s(S_WS,2)} offset:{16*k}\ns_nop 1")
    E.label("L_end")
    I("s_endpgm")

    src = HEADER + f"; @launch grid=(256,1,1) block=(256,1,1) lds={LDS_BYTES}\n"
    src += f'.amdgcn_target "amdgcn-amd-amdhsa--gfx950"\n.text\n.globl {NAME}\n.p2align 8\n.type {NAME},@function\n{NAME}:\n'
    src += E.text()
    src += f""".section .rodata,"a"
.p2align 6
.amdhsa_kernel {NAME}
  .amdhsa_next_free_vgpr 512
  .amdhsa_next_free_sgpr 96
  .amdhsa_accum_offset 256
  .amdhsa_group_segment_fixed_size 0
  .amdhsa_kernarg_size 104
  .amdhsa_user_sgpr_count 2
  .amdhsa_user_sgpr_kernarg_segment_ptr 1
  .amdhsa_system_sgpr_workgroup_id_x 1
  .amdhsa_float_denorm_mode_32 3
.end_amdhsa_kernel
"""
    return src, E


def parse_kw(a):
    kw = {}
    for x in a.split(","):
        if not x:
            continue
        k, val = x.split("=")
        kw[k] = val.replace("+", " ").replace("none", "") if k in ("wpol", "bits") else int(val)
    return kw


if __name__ == "__main__":
    src, E = gen(**parse_kw(sys.argv[2] if len(sys.argv) > 2 else ""))
    open(sys.argv[1], "w").write(src)
    print(f"{E.count} instructions, {E.nops} padded wait states")
```
